```python
import torch

def _softmax(x, axis=-1):
    return torch.softmax(x, dim=axis)
def _gelu(x):
    return torch.nn.functional.gelu(x, approximate="tanh")
def _silu(x):
    return torch.nn.functional.silu(x)
def _sigmoid(x):
    return torch.sigmoid(x)
def _layernorm(x, axis=-1, eps=1e-5):
    m = x.mean(dim=axis, keepdim=True)
    v = x.var(dim=axis, keepdim=True, unbiased=False)
    return (x - m) / torch.sqrt(v + eps)
def _scatter_add(tgt, idx, src, axis=0):
    return tgt.clone().index_add_(axis, idx, src)
def _segment_sum(src, seg, n):
    out = torch.zeros((n,) + src.shape[1:], dtype=src.dtype)
    return out.index_add_(0, seg, src)
def _pad(x, pw):
    flat = tuple(v for pair in reversed(pw) for v in pair)
    return torch.nn.functional.pad(x, flat)

kernel_name = 'standalone__gqa_block_cached__near_ridge'

def setup_inputs():

    _w = (lambda a: (lambda t: t.to(torch.bfloat16) if t.is_floating_point() else t)(torch.as_tensor(a)))
    B, Sq, D = 8, 112, 512
    Hq, Hkv, Sk, Dh = 32, 32, 1024, 128
    assert Hq % Hkv == 0, (Hq, Hkv)
    return {
        "x": _w((lambda *s: torch.randn(*s, dtype=torch.bfloat16) * 0.8)(B, Sq, D)),
        "k_cache": _w((lambda *s: torch.randn(*s, dtype=torch.bfloat16) * 0.8)(B, Hkv, Sk, Dh)),
        "v_cache": _w((lambda *s: torch.randn(*s, dtype=torch.bfloat16) * 0.05)(B, Hkv, Sk, Dh)),
        "wq": _w((lambda *s: torch.randn(*s, dtype=torch.bfloat16) * 0.8)(D, Hq * Dh) * (D ** -0.5)),
        "wo": _w((lambda *s: torch.randn(*s, dtype=torch.bfloat16) * 0.05)(Hq * Dh, D) * ((Hq * Dh) ** -0.5)),
    }

def reference(x, k_cache, v_cache, wq, wo):
    B, Sq, D = x.shape
    Hq, Dh = 32, 128
    Hkv = k_cache.shape[1]
    rep = Hq // Hkv
    q = (lambda x, *d: x.permute(*d))((x @ wq).reshape(B, Sq, Hq, Dh), 0, 2, 1, 3)
    k = (lambda x, n, axis: torch.repeat_interleave(x, n, dim=axis))(k_cache, rep, axis=1)
    v = (lambda x, n, axis: torch.repeat_interleave(x, n, dim=axis))(v_cache, rep, axis=1)
    scores = torch.einsum("bhqd,bhkd->bhqk", q, k) * (Dh ** -0.5)
    p = _softmax(scores, axis=-1)
    o = torch.einsum("bhqk,bhkd->bhqd", p, v)
    return (lambda x, *d: x.permute(*d))(o, 0, 2, 1, 3).reshape(B, Sq, Hq * Dh) @ wo
```

```python
import struct
from gen import Asm, add64, srd, kd, WS_Q, WS_O

NS = 4
SLOT = 32768
LDS_BYTES = NS * SLOT
NT = 16


def f32bits(x):
    return struct.unpack("<I", struct.pack("<f", x))[0]


def gen_attn(name):
    a = Asm()
    a.raw(".p2align 8")
    a.label(name)
    a("s_cmp_ge_u32 s2, 256")
    a(f"s_cbranch_scc1 {name}_done")
    a("s_load_dwordx2 s[16:17], s[0:1], 8")
    a("s_load_dwordx2 s[18:19], s[0:1], 16")
    a("s_load_dwordx2 s[20:21], s[0:1], 56")
    a("v_and_b32 v1, 63, v0")
    a("v_lshrrev_b32 v2, 6, v0")
    a("s_nop 0")
    a("v_readfirstlane_b32 s24, v2")
    a("s_lshr_b32 s22, s2, 5")
    a("s_and_b32 s23, s2, 31")
    a("s_and_b32 s25, s24, 3")
    a("s_lshr_b32 s26, s24, 2")
    a("s_waitcnt lgkmcnt(0)")
    a("s_lshl_b32 s3, s2, 18")
    add64(a, 16, 16, "s3")
    srd(a, 4, 16, 262144)
    add64(a, 18, 18, "s3")
    srd(a, 8, 18, 262144)
    a("s_mul_i32 s3, s22, 917504")
    a("s_mov_b32 s28, s20")
    a("s_mov_b32 s29, s21")
    add64(a, 28, 28, "s3")
    srd(a, 12, 28, 917504)
    a("v_lshrrev_b32 v2, 4, v1")
    a("v_and_b32 v3, 15, v1")
    a("s_lshl_b32 s3, s24, 3")
    for j in range(2):
        a(f"v_add_u32 v4, {4*j}, v2")
        a("v_add_u32 v4, s3, v4")
        a("v_lshlrev_b32 v4, 8, v4")
        a("s_lshl_b32 s27, s24, 1")
        a(f"s_add_u32 s27, s27, {j}")
        a("s_and_b32 s27, s27, 3")
        a("v_lshlrev_b32 v5, 2, v2")
        a("v_or_b32 v5, s27, v5")
        a("v_xor_b32 v5, v5, v3")
        a("v_lshl_add_u32 v4, v5, 4, v4")
        if j:
            a("v_subrev_u32 v4, 1024, v4")
        a(f"v_mov_b32 v{6+j}, v4")
    a("s_lshl_b32 s30, s24, 11")

    def dma(slot_sreg_or_imm):
        a("s_add_u32 m0, s33, s30")
        a("s_nop 0")
        a("buffer_load_dwordx4 v6, s[4:7], s31 offen lds")
        a("buffer_load_dwordx4 v7, s[4:7], s31 offen offset:1024 lds")
        a("s_add_u32 m0, m0, 16384")
        a("s_nop 0")
        a("buffer_load_dwordx4 v6, s[8:11], s31 offen lds")
        a("buffer_load_dwordx4 v7, s[8:11], s31 offen offset:1024 lds")

    a("s_lshl_b32 s3, s25, 5")
    a("v_and_b32 v4, 31, v1")
    a("v_add_u32 v4, s3, v4")
    a("v_lshlrev_b32 v4, 13, v4")
    a("v_lshrrev_b32 v5, 5, v1")
    a("v_lshl_add_u32 v4, v5, 4, v4")
    a("s_lshl_b32 s3, s23, 8")
    a("v_add_u32 v4, s3, v4")
    for ks in range(8):
        a(f"buffer_load_dwordx4 v[{32+4*ks}:{35+4*ks}], v4, s[12:15], 0 offen offset:{ks*32}")
    a("s_mov_b32 s31, 0")
    a("s_mov_b32 s33, 0")
    for t in range(NS - 1):
        dma(None)
        a("s_add_u32 s31, s31, 16384")
        a(f"s_add_u32 s33, s33, {SLOT}")
    a("v_and_b32 v2, 31, v1")
    a("s_lshl_b32 s3, s26, 5")
    a("v_add_u32 v2, s3, v2")
    a("v_and_b32 v3, 3, v2")
    a("v_lshlrev_b32 v3, 2, v3")
    a("v_bfe_u32 v4, v2, 2, 2")
    a("v_or_b32 v3, v3, v4")
    a("v_lshrrev_b32 v5, 5, v1")
    for ks in range(8):
        a(f"v_add_u32 v4, {2*ks}, v5")
        a("v_xor_b32 v4, v4, v3")
        a("v_lshlrev_b32 v4, 4, v4")
        a(f"v_lshl_add_u32 v{8+ks}, v2, 8, v4")
    a("v_and_b32 v2, 15, v1")
    a("v_bfe_u32 v3, v1, 4, 1")
    for dt in range(4):
        for rd in range(2):
            a("v_lshrrev_b32 v27, 2, v2")
            a("v_lshl_add_u32 v28, v5, 2, v27")
            a(f"v_add_u32 v28, {8*rd}, v28")
            a("v_add_u32 v28, s3, v28")
            a("v_bfe_u32 v29, v2, 1, 1")
            a("v_lshl_add_u32 v29, v3, 1, v29")
            a(f"v_add_u32 v29, {4*dt}, v29")
            a("v_lshlrev_b32 v30, 2, v27")
            a("v_add_u32 v30, v30, v5")
            a(f"v_add_u32 v30, {2*rd}, v30")
            a("v_xor_b32 v29, v29, v30")
            a("v_lshlrev_b32 v29, 4, v29")
            a("v_lshl_add_u32 v29, v28, 8, v29")
            a("v_and_b32 v30, 1, v2")
            a("v_lshl_add_u32 v29, v30, 3, v29")
            a(f"v_add_u32 v{16+dt*2+rd}, 16384, v29")
    a("v_mov_b32 v24, 0xff800000")
    a("v_mov_b32 v25, 0")
    for r in range(64):
        a(f"v_mov_b32 v{64+r}, 0")
    a(f"s_mov_b32 s35, {f32bits(0.08838834764831845*1.4426950408889634):#x}")
    a("s_mov_b32 s32, 0")
    a("s_mov_b32 s34, 0")
    a.label(f"{name}_loop")
    a(f"s_cmp_gt_u32 s32, {NT-NS+1}")
    a(f"s_cbranch_scc0 {name}_w1")
    a("s_waitcnt vmcnt(0)")
    a.label(f"{name}_w1")
    a(f"s_waitcnt vmcnt({(NS-2)*4})")
    a("s_barrier")
    a(f"s_cmp_ge_u32 s32, {NT-(NS-1)}")
    a(f"s_cbranch_scc1 {name}_nodma")
    dma(None)
    a.label(f"{name}_nodma")
    a("s_add_u32 s31, s31, 16384")
    a(f"s_add_u32 s33, s33, {SLOT}")
    a(f"s_cmp_ge_u32 s33, {NS*SLOT}")
    a("s_cselect_b32 s33, 0, s33")
    for ks in range(8):
        a(f"ds_read_b128 v[{152+4*ks}:{155+4*ks}], v{8+ks}")
    for ks in range(8):
        a(f"s_waitcnt lgkmcnt({7-ks})")
        src_c = "0" if ks == 0 else "v[128:143]"
        a(f"v_mfma_f32_32x32x16_bf16 v[128:143], v[{152+4*ks}:{155+4*ks}], v[{32+4*ks}:{35+4*ks}], {src_c}")
    for ks2 in range(2):
        for dt in range(4):
            r = 184 + (ks2 * 4 + dt) * 4
            for rd in range(2):
                a(f"ds_read_b64_tr_b16 v[{r+2*rd}:{r+2*rd+1}], v{16+dt*2+rd} offset:{ks2*4096}")
    a("s_nop 7")
    a("v_max3_f32 v27, v128, v129, v130")
    for k in range(6):
        a(f"v_max3_f32 v27, v27, v{131+2*k}, v{132+2*k}")
    a("v_max_f32 v27, v27, v143")
    a("v_mov_b32 v28, v27")
    a("s_nop 1")
    a("v_permlane32_swap_b32 v27, v28")
    a("v_max_f32 v27, v27, v28")
    a("v_max_f32 v27, v27, v24")
    a("v_cmp_gt_f32 vcc, v27, v24")
    a("s_nop 1")
    a(f"s_cbranch_vccz {name}_noscale")
    a("v_sub_f32 v28, v24, v27")
    a("v_mul_f32 v28, s35, v28")
    a("v_exp_f32 v28, v28")
    a("s_nop 0")
    a("v_mul_f32 v25, v25, v28")
    for r in range(64):
        a(f"v_mul_f32 v{64+r}, v{64+r}, v28")
    a.label(f"{name}_noscale")
    a("v_mov_b32 v24, v27")
    a("v_mul_f32 v26, s35, v27")
    for r in range(16):
        a(f"v_fma_f32 v{128+r}, v{128+r}, s35, -v26")
        a(f"v_exp_f32 v{128+r}, v{128+r}")
    a("s_nop 0")
    for r in range(16):
        a(f"v_add_f32 v25, v25, v{128+r}")
    for r in range(8):
        a(f"v_cvt_pk_bf16_f32 v{144+r}, v{128+2*r}, v{129+2*r}")
    a("s_waitcnt lgkmcnt(0)")
    a("s_nop 0")
    for ks2 in range(2):
        for dt in range(4):
            r = 184 + (ks2 * 4 + dt) * 4
            a(f"v_mfma_f32_32x32x16_bf16 v[{64+16*dt}:{79+16*dt}], v[{r}:{r+3}], v[{144+4*ks2}:{147+4*ks2}], v[{64+16*dt}:{79+16*dt}]")
    a(f"s_add_u32 s34, s34, {SLOT}")
    a(f"s_cmp_ge_u32 s34, {NS*SLOT}")
    a(f"s_mov_b32 s36, {SLOT}")
    a(f"s_cselect_b32 s36, {-(NS-1)*SLOT}, s36")
    a("s_cselect_b32 s34, 0, s34")
    for r in range(8, 24):
        a(f"v_add_u32 v{r}, s36, v{r}")
    a("s_add_u32 s32, s32, 1")
    a(f"s_cmp_lt_u32 s32, {NT}")
    a(f"s_cbranch_scc1 {name}_loop")
    a("s_nop 15")
    a("v_mov_b32 v28, v25")
    a("s_nop 1")
    a("v_permlane32_swap_b32 v25, v28")
    a("v_add_f32 v25, v25, v28")
    a("s_waitcnt vmcnt(0) lgkmcnt(0)")
    a("s_barrier")
    a("v_lshlrev_b32 v2, 4, v1")
    a("s_lshl_b32 s3, s25, 14")
    a("v_add_u32 v2, s3, v2")
    a("v_lshlrev_b32 v3, 3, v1")
    a("s_lshl_b32 s3, s25, 9")
    a("v_add_u32 v3, s3, v3")
    a("v_add_u32 v3, 0x10000, v3")
    a("s_cmp_eq_u32 s26, 0")
    a(f"s_cbranch_scc1 {name}_m0")
    for c in range(16):
        a(f"ds_write_b128 v2, v[{64+4*c}:{67+4*c}] offset:{c*1024}")
    a("ds_write_b64 v3, v[24:25]")
    a("s_waitcnt lgkmcnt(0)")
    a("s_barrier")
    a(f"s_branch {name}_done")
    a.label(f"{name}_m0")
    a("s_barrier")
    for c in range(16):
        a(f"ds_read_b128 v[{128+4*c}:{131+4*c}], v2 offset:{c*1024}")
    a("ds_read_b64 v[26:27], v3")
    a("s_waitcnt lgkmcnt(0)")
    a("v_max_f32 v28, v24, v26")
    a("v_sub_f32 v29, v24, v28")
    a("v_sub_f32 v30, v26, v28")
    a("v_mul_f32 v29, s35, v29")
    a("v_mul_f32 v30, s35, v30")
    a("v_exp_f32 v29, v29")
    a("v_exp_f32 v30, v30")
    a("s_nop 0")
    a("v_mul_f32 v25, v25, v29")
    a("v_fmac_f32 v25, v27, v30")
    a("v_rcp_f32 v25, v25")
    a("s_nop 0")
    a("v_mul_f32 v29, v29, v25")
    a("v_mul_f32 v30, v30, v25")
    for r in range(64):
        a(f"v_mul_f32 v{64+r}, v{64+r}, v29")
        a(f"v_fmac_f32 v{64+r}, v{128+r}, v30")
    a("s_mul_i32 s3, s22, 917504")
    a(f"s_add_u32 s3, s3, {WS_O}")
    add64(a, 20, 20, "s3")
    srd(a, 12, 20, 917504)
    a("s_lshl_b32 s3, s25, 5")
    a("v_and_b32 v4, 31, v1")
    a("v_add_u32 v4, s3, v4")
    a("v_lshlrev_b32 v4, 13, v4")
    a("v_lshrrev_b32 v5, 5, v1")
    a("v_lshl_add_u32 v4, v5, 4, v4")
    a("s_lshl_b32 s3, s23, 8")
    a("v_add_u32 v4, s3, v4")
    for dt in range(4):
        for jp in range(2):
            T = 152 + ((dt * 2 + jp) & 1) * 4
            for q in range(2):
                base = 64 + 16 * dt + 4 * (2 * jp + q)
                a(f"v_cvt_pk_bf16_f32 v{T+2*q}, v{base}, v{base+1}")
                a(f"v_cvt_pk_bf16_f32 v{T+2*q+1}, v{base+2}, v{base+3}")
            a("s_nop 1")
            a(f"v_permlane32_swap_b32 v{T}, v{T+2}")
            a(f"v_permlane32_swap_b32 v{T+1}, v{T+3}")
            a(f"buffer_store_dwordx4 v[{T}:{T+3}], v4, s[12:15], 0 offen offset:{dt*64+jp*32}")
            a("s_nop 1")
    a.label(f"{name}_done")
    a("s_endpgm")
    return a.text(), kd(name, 216, 40)
```

```python
import sys

WS_Q = 0
WS_O = 8 << 20
WS_P = 16 << 20

HEADER = """; Kernarg layout for this problem (64 bytes, ptrs only, base s[0:1]):
"""


class Asm:
    def __init__(self):
        self.L = []

    def __call__(self, s):
        self.L.append("    " + s)

    def label(self, s):
        self.L.append(s + ":")

    def raw(self, s):
        self.L.append(s)

    def text(self):
        return "\n".join(self.L) + "\n"


def add64(a, dst_lo, src_lo, imm_or_sreg):
    a(f"s_add_u32 s{dst_lo}, s{src_lo}, {imm_or_sreg}")
    a(f"s_addc_u32 s{dst_lo+1}, s{src_lo+1}, 0")


def srd(a, d, base_lo, nrec):
    a(f"s_mov_b32 s{d}, s{base_lo}")
    a(f"s_and_b32 s{d+1}, s{base_lo+1}, 0xffff")
    a(f"s_mov_b32 s{d+2}, {nrec}")
    a(f"s_mov_b32 s{d+3}, 0x00020000")


def kd(name, nvgpr, nsgpr=96):
    acc = (nvgpr + 3) // 4 * 4
    return f""".section .rodata,"a"
.p2align 6
.amdhsa_kernel {name}
  .amdhsa_next_free_vgpr {nvgpr}
  .amdhsa_next_free_sgpr {nsgpr}
  .amdhsa_accum_offset {acc}
  .amdhsa_group_segment_fixed_size 0
  .amdhsa_kernarg_size 64
  .amdhsa_user_sgpr_count 2
  .amdhsa_user_sgpr_kernarg_segment_ptr 1
  .amdhsa_system_sgpr_workgroup_id_x 1
.end_amdhsa_kernel
.text
"""


def gen_proj(name, mode):
    a = Asm()
    a.raw(".p2align 8")
    a.label(name)
    a("s_cmp_ge_u32 s2, 256")
    a(f"s_cbranch_scc1 {name}_done")
    if mode == "q":
        a("s_load_dwordx2 s[16:17], s[0:1], 0")
        a("s_load_dwordx2 s[18:19], s[0:1], 24")
    else:
        a("s_load_dwordx2 s[18:19], s[0:1], 32")
    a("s_load_dwordx2 s[20:21], s[0:1], 56")
    a("s_lshr_b32 s22, s2, 5")
    a("v_and_b32 v1, 63, v0")
    a("v_lshrrev_b32 v2, 6, v0")
    a("s_nop 0")
    a("v_readfirstlane_b32 s24, v2")
    a("s_waitcnt lgkmcnt(0)")
    if mode == "q":
        SA, SW = 1024, 8192
        a("s_and_b32 s23, s2, 31")
        a("s_mul_i32 s3, s22, 114688")
        add64(a, 16, 16, "s3")
        srd(a, 4, 16, 114688)
        a("s_lshl_b32 s3, s23, 8")
        add64(a, 18, 18, "s3")
        a("s_sub_u32 s25, 4194304, s3")
        srd(a, 8, 18, "s25")
        a("s_mul_i32 s3, s22, 917504")
        add64(a, 20, 20, "s3")
        srd(a, 12, 20, 917504)
        a("s_lshl_b32 s26, s23, 8")
        a("s_mov_b32 s27, 0")
    else:
        SA, SW = 8192, 1024
        a("s_bfe_u32 s23, s2, 0x20003")
        a("s_and_b32 s28, s2, 7")
        a("s_mul_i32 s3, s22, 917504")
        a(f"s_add_u32 s3, s3, {WS_O}")
        a("s_mov_b32 s16, s20")
        a("s_mov_b32 s17, s21")
        add64(a, 16, 16, "s3")
        srd(a, 4, 16, 917504)
        a("s_lshl_b32 s3, s28, 19")
        a("s_lshl_b32 s29, s23, 8")
        a("s_add_u32 s3, s3, s29")
        add64(a, 18, 18, "s3")
        a("s_sub_u32 s25, 4194304, s3")
        srd(a, 8, 18, "s25")
        a("s_mul_i32 s3, s28, 896")
        a("s_mul_i32 s29, s22, 112")
        a("s_add_u32 s3, s3, s29")
        a("s_lshl_b32 s3, s3, 11")
        a(f"s_add_u32 s3, s3, {WS_P}")
        add64(a, 20, 20, "s3")
        srd(a, 12, 20, 112 * 2048)
        a("s_lshl_b32 s26, s23, 9")
        a("s_lshl_b32 s27, s28, 10")

    a("v_lshrrev_b32 v2, 4, v1")
    a("v_and_b32 v3, 15, v1")
    a("s_lshl_b32 s3, s24, 4")
    for j in range(4):
        a(f"v_add_u32 v4, {4*j}, v2")
        a("v_add_u32 v4, s3, v4")
        a(f"v_mul_u32_u24 v4, {SW}, v4") if SW < 65536 else None
        a("v_lshlrev_b32 v5, 2, v2")
        a(f"v_or_b32 v5, {j}, v5")
        a("v_xor_b32 v5, v5, v3")
        a("v_lshlrev_b32 v5, 4, v5")
        a(f"v_add_u32 v{6+j}, v4, v5")
    a("s_and_b32 s3, s24, 3")
    a("s_lshl_b32 s3, s3, 5")
    a("v_and_b32 v4, 31, v1")
    a("v_add_u32 v4, s3, v4")
    a(f"v_mul_u32_u24 v10, {SA}, v4")
    a("v_lshrrev_b32 v5, 5, v1")
    a("v_lshlrev_b32 v11, 4, v5")
    a("v_add_u32 v10, v10, v11")
    a("v_add_u32 v10, s27, v10")
    a("s_lshl_b32 s30, s24, 12")
    for c in range(4):
        for ks in range(8 * c, 8 * c + 8):
            a(f"buffer_load_dwordx4 v[{32+4*ks}:{35+4*ks}], v10, s[4:7], 0 offen offset:{ks*32}")
        a(f"s_mov_b32 s31, {c*128*SW}")
        for j in range(4):
            a(f"s_add_u32 m0, s30, {c*32768 + j*1024}")
            a("s_nop 0")
            a(f"buffer_load_dwordx4 v{6+j}, s[8:11], s31 offen lds")
    a("v_and_b32 v2, 15, v1")
    a("v_bfe_u32 v3, v1, 4, 1")
    a("v_lshrrev_b32 v5, 5, v1")
    a("s_lshr_b32 s3, s24, 2")
    a("s_lshl_b32 s3, s3, 3")
    for ntl in range(2):
        for rd in range(2):
            a("v_lshrrev_b32 v20, 2, v2")
            a("v_lshl_add_u32 v21, v5, 3, v20")
            a(f"v_add_u32 v21, {4*rd}, v21")
            a("v_bfe_u32 v22, v2, 1, 1")
            a("v_lshl_add_u32 v22, v3, 1, v22")
            a(f"v_add_u32 v22, {4*ntl}, v22")
            a("v_add_u32 v22, s3, v22")
            a("v_lshlrev_b32 v23, 2, v20")
            a("v_lshl_add_u32 v23, v5, 1, v23")
            a(f"v_add_u32 v23, {rd}, v23")
            a("v_xor_b32 v22, v22, v23")
            a("v_lshlrev_b32 v22, 4, v22")
            a("v_lshl_add_u32 v22, v21, 8, v22")
            a("v_and_b32 v23, 1, v2")
            a(f"v_lshl_add_u32 v{12+ntl*2+rd}, v23, 3, v22")
    for t in range(4):
        a(f"v_add_u32 v{16+t}, 0x10000, v{12+t}")
    a("s_waitcnt vmcnt(0)")
    a("s_barrier")
    ACC = 160
    AF = 192

    def rd_frags(ks, buf):
        hi = ks >> 4
        off = (ks & 15) * 4096
        for ntl in range(2):
            for rd in range(2):
                r = AF + buf * 8 + ntl * 4 + rd * 2
                a(f"ds_read_b64_tr_b16 v[{r}:{r+1}], v{12+hi*4+ntl*2+rd} offset:{off}")

    rd_frags(0, 0)
    for ks in range(32):
        buf = ks & 1
        if ks + 1 < 32:
            rd_frags(ks + 1, buf ^ 1)
            a("s_waitcnt lgkmcnt(4)")
        else:
            a("s_waitcnt lgkmcnt(0)")
        for ntl in range(2):
            r = AF + buf * 8 + ntl * 4
            c = f"v[{ACC+16*ntl}:{ACC+16*ntl+15}]"
            src_c = "0" if ks == 0 else c
            a(f"v_mfma_f32_32x32x16_bf16 {c}, v[{r}:{r+3}], v[{32+4*ks}:{35+4*ks}], {src_c}")
    a("s_nop 15")
    a("s_nop 3")
    a("s_and_b32 s3, s24, 3")
    a("s_lshl_b32 s3, s3, 5")
    a("v_and_b32 v4, 31, v1")
    a("v_add_u32 v4, s3, v4")
    a("v_lshrrev_b32 v5, 5, v1")
    a("s_lshr_b32 s3, s24, 2")
    if mode == "q":
        a("v_lshlrev_b32 v4, 13, v4")
        a("v_lshl_add_u32 v4, v5, 4, v4")
        a("s_lshl_b32 s3, s3, 7")
        a("s_add_u32 s3, s3, s26")
        a("v_add_u32 v4, s3, v4")
        for ntl in range(2):
            for jp in range(2):
                T = 208
                for q in range(2):
                    base = ACC + 16 * ntl + 4 * (2 * jp + q)
                    a(f"v_cvt_pk_bf16_f32 v{T+2*q}, v{base}, v{base+1}")
                    a(f"v_cvt_pk_bf16_f32 v{T+2*q+1}, v{base+2}, v{base+3}")
                a("s_nop 1")
                a(f"v_permlane32_swap_b32 v{T}, v{T+2}")
                a(f"v_permlane32_swap_b32 v{T+1}, v{T+3}")
                a(f"buffer_store_dwordx4 v[{T}:{T+3}], v4, s[12:15], 0 offen offset:{ntl*64+jp*32}")
                a("s_nop 1")
    else:
        a("v_lshlrev_b32 v4, 11, v4")
        a("v_lshl_add_u32 v4, v5, 4, v4")
        a("s_lshl_b32 s3, s3, 8")
        a("s_add_u32 s3, s3, s26")
        a("v_add_u32 v4, s3, v4")
        for ntl in range(2):
            for rq in range(4):
                base = ACC + 16 * ntl + 4 * rq
                a(f"buffer_store_dwordx4 v[{base}:{base+3}], v4, s[12:15], 0 offen offset:{ntl*128+rq*32}")
    a.label(f"{name}_done")
    a("s_endpgm")
    return a.text(), kd(name, 216, 40)


def gen_reduce(name):
    a = Asm()
    a.raw(".p2align 8")
    a.label(name)
    a("s_cmp_ge_u32 s2, 448")
    a(f"s_cbranch_scc1 {name}_done")
    a("s_load_dwordx2 s[16:17], s[0:1], 40")
    a("s_load_dwordx2 s[20:21], s[0:1], 56")
    a("s_lshl_b32 s3, s2, 8")
    a("v_add_u32 v1, s3, v0")
    a("v_lshlrev_b32 v2, 4, v1")
    a("v_lshlrev_b32 v3, 3, v1")
    a("s_waitcnt lgkmcnt(0)")
    add64(a, 20, 20, WS_P)
    srd(a, 4, 20, 8 * 896 * 2048)
    srd(a, 8, 16, 896 * 1024)
    for s in range(8):
        a(f"s_mov_b32 s12, {s*896*2048}")
        a(f"buffer_load_dwordx4 v[{4+4*s}:{7+4*s}], v2, s[4:7], s12 offen")
    a("s_waitcnt vmcnt(0)")
    for s in range(1, 8):
        for j in range(4):
            a(f"v_add_f32 v{4+j}, v{4+j}, v{4+4*s+j}")
    a("v_cvt_pk_bf16_f32 v4, v4, v5")
    a("v_cvt_pk_bf16_f32 v5, v6, v7")
    a("buffer_store_dwordx2 v[4:5], v3, s[8:11], 0 offen")
    a.label(f"{name}_done")
    a("s_endpgm")
    return a.text(), kd(name, 40, 24)


def main():
    import gen_attn
    launches = [
        ("qproj_kernel", 256, 512, 131072),
        ("attn_kernel", 256, 512, gen_attn.LDS_BYTES),
        ("oproj_kernel", 256, 512, 131072),
        ("reduce_kernel", 448, 256, 0),
    ]
    out = HEADER
    for n, g, b, l in launches:
        out += f"; @launch kernel={n} grid=({g},1,1) block=({b},1,1) lds={l}\n"
    out += '.amdgcn_target "amdgcn-amd-amdhsa--gfx950"\n.text\n'
    parts = [gen_proj("qproj_kernel", "q"), gen_attn.gen_attn("attn_kernel"), gen_proj("oproj_kernel", "o"),
             gen_reduce("reduce_kernel")]
    for body, desc in parts:
        out += body + desc
    open(sys.argv[1] if len(sys.argv) > 1 else "standalone__gqa_block_cached__near_ridge.s", "w").write(out)


if __name__ == "__main__":
    main()
```

```python
import struct
from gen import Asm, add64, srd, kd, WS_Q, WS_O

NS = 4
SLOT = 32768
LDS_BYTES = NS * SLOT
NT = 16


def f32bits(x):
    return struct.unpack("<I", struct.pack("<f", x))[0]


def gen_attn(name):
    a = Asm()
    a.raw(".p2align 8")
    a.label(name)
    a("s_cmp_ge_u32 s2, 256")
    a(f"s_cbranch_scc1 {name}_done")
    a("s_load_dwordx2 s[16:17], s[0:1], 8")
    a("s_load_dwordx2 s[18:19], s[0:1], 16")
    a("s_load_dwordx2 s[20:21], s[0:1], 56")
    a("v_and_b32 v1, 63, v0")
    a("v_lshrrev_b32 v2, 6, v0")
    a("s_nop 0")
    a("v_readfirstlane_b32 s24, v2")
    a("s_lshr_b32 s22, s2, 5")
    a("s_and_b32 s23, s2, 31")
    a("s_and_b32 s25, s24, 3")
    a("s_lshr_b32 s26, s24, 2")
    a("s_waitcnt lgkmcnt(0)")
    a("s_lshl_b32 s3, s2, 18")
    add64(a, 16, 16, "s3")
    srd(a, 4, 16, 262144)
    add64(a, 18, 18, "s3")
    srd(a, 8, 18, 262144)
    a("s_mul_i32 s3, s22, 917504")
    a("s_mov_b32 s28, s20")
    a("s_mov_b32 s29, s21")
    add64(a, 28, 28, "s3")
    srd(a, 12, 28, 917504)
    a("v_lshrrev_b32 v2, 4, v1")
    a("v_and_b32 v3, 15, v1")
    a("s_lshl_b32 s3, s24, 3")
    for j in range(2):
        a(f"v_add_u32 v4, {4*j}, v2")
        a("v_add_u32 v4, s3, v4")
        a("v_lshlrev_b32 v4, 8, v4")
        a("s_lshl_b32 s27, s24, 1")
        a(f"s_add_u32 s27, s27, {j}")
        a("s_and_b32 s27, s27, 3")
        a("v_lshlrev_b32 v5, 2, v2")
        a("v_or_b32 v5, s27, v5")
        a("v_xor_b32 v5, v5, v3")
        a("v_lshl_add_u32 v4, v5, 4, v4")
        if j:
            a("v_subrev_u32 v4, 1024, v4")
        a(f"v_mov_b32 v{6+j}, v4")
    a("s_lshl_b32 s30, s24, 11")

    def dma(slot_sreg_or_imm):
        a("s_add_u32 m0, s33, s30")
        a("s_nop 0")
        a("buffer_load_dwordx4 v6, s[4:7], s31 offen lds")
        a("buffer_load_dwordx4 v7, s[4:7], s31 offen offset:1024 lds")
        a("s_add_u32 m0, m0, 16384")
        a("s_nop 0")
        a("buffer_load_dwordx4 v6, s[8:11], s31 offen lds")
        a("buffer_load_dwordx4 v7, s[8:11], s31 offen offset:1024 lds")

    a("s_lshl_b32 s3, s25, 5")
    a("v_and_b32 v4, 31, v1")
    a("v_add_u32 v4, s3, v4")
    a("v_lshlrev_b32 v4, 13, v4")
    a("v_lshrrev_b32 v5, 5, v1")
    a("v_lshl_add_u32 v4, v5, 4, v4")
    a("s_lshl_b32 s3, s23, 8")
    a("v_add_u32 v4, s3, v4")
    for ks in range(8):
        a(f"buffer_load_dwordx4 v[{32+4*ks}:{35+4*ks}], v4, s[12:15], 0 offen offset:{ks*32}")
    a("s_mov_b32 s31, 0")
    a("s_mov_b32 s33, 0")
    for t in range(NS - 1):
        dma(None)
        a("s_add_u32 s31, s31, 16384")
        a(f"s_add_u32 s33, s33, {SLOT}")
    a("v_and_b32 v2, 31, v1")
    a("s_lshl_b32 s3, s26, 5")
    a("v_add_u32 v2, s3, v2")
    a("v_and_b32 v3, 3, v2")
    a("v_lshlrev_b32 v3, 2, v3")
    a("v_bfe_u32 v4, v2, 2, 2")
    a("v_or_b32 v3, v3, v4")
    a("v_lshrrev_b32 v5, 5, v1")
    for ks in range(8):
        a(f"v_add_u32 v4, {2*ks}, v5")
        a("v_xor_b32 v4, v4, v3")
        a("v_lshlrev_b32 v4, 4, v4")
        a(f"v_lshl_add_u32 v{8+ks}, v2, 8, v4")
    a("v_and_b32 v2, 15, v1")
    a("v_bfe_u32 v3, v1, 4, 1")
    for dt in range(4):
        for rd in range(2):
            a("v_lshrrev_b32 v27, 2, v2")
            a("v_lshl_add_u32 v28, v5, 2, v27")
            a(f"v_add_u32 v28, {8*rd}, v28")
            a("v_add_u32 v28, s3, v28")
            a("v_bfe_u32 v29, v2, 1, 1")
            a("v_lshl_add_u32 v29, v3, 1, v29")
            a(f"v_add_u32 v29, {4*dt}, v29")
            a("v_lshlrev_b32 v30, 2, v27")
            a("v_add_u32 v30, v30, v5")
            a(f"v_add_u32 v30, {2*rd}, v30")
            a("v_xor_b32 v29, v29, v30")
            a("v_lshlrev_b32 v29, 4, v29")
            a("v_lshl_add_u32 v29, v28, 8, v29")
            a("v_and_b32 v30, 1, v2")
            a("v_lshl_add_u32 v29, v30, 3, v29")
            a(f"v_add_u32 v{16+dt*2+rd}, 16384, v29")
    a("v_mov_b32 v24, 0xff800000")
    a("v_mov_b32 v25, 0")
    for r in range(64):
        a(f"v_mov_b32 v{64+r}, 0")
    a(f"s_mov_b32 s35, {f32bits(0.08838834764831845*1.4426950408889634):#x}")
    a("s_mov_b32 s32, 0")
    a("s_mov_b32 s34, 0")
    a.label(f"{name}_loop")
    a(f"s_cmp_gt_u32 s32, {NT-NS+1}")
    a(f"s_cbranch_scc0 {name}_w1")
    a("s_waitcnt vmcnt(0)")
    a.label(f"{name}_w1")
    a(f"s_waitcnt vmcnt({(NS-2)*4})")
    a("s_barrier")
    a(f"s_cmp_ge_u32 s32, {NT-(NS-1)}")
    a(f"s_cbranch_scc1 {name}_nodma")
    dma(None)
    a.label(f"{name}_nodma")
    a("s_add_u32 s31, s31, 16384")
    a(f"s_add_u32 s33, s33, {SLOT}")
    a(f"s_cmp_ge_u32 s33, {NS*SLOT}")
    a("s_cselect_b32 s33, 0, s33")
    for ks in range(8):
        a(f"ds_read_b128 v[{152+4*ks}:{155+4*ks}], v{8+ks}")
    for ks in range(8):
        a(f"s_waitcnt lgkmcnt({7-ks})")
        src_c = "0" if ks == 0 else "v[128:143]"
        a(f"v_mfma_f32_32x32x16_bf16 v[128:143], v[{152+4*ks}:{155+4*ks}], v[{32+4*ks}:{35+4*ks}], {src_c}")
    for ks2 in range(2):
        for dt in range(4):
            r = 184 + (ks2 * 4 + dt) * 4
            for rd in range(2):
                a(f"ds_read_b64_tr_b16 v[{r+2*rd}:{r+2*rd+1}], v{16+dt*2+rd} offset:{ks2*4096}")
    a("s_nop 7")
    a("v_max3_f32 v27, v128, v129, v130")
    for k in range(6):
        a(f"v_max3_f32 v27, v27, v{131+2*k}, v{132+2*k}")
    a("v_max_f32 v27, v27, v143")
    a("v_mov_b32 v28, v27")
    a("s_nop 1")
    a("v_permlane32_swap_b32 v27, v28")
    a("v_max_f32 v27, v27, v28")
    a("v_max_f32 v27, v27, v24")
    a("v_cmp_gt_f32 vcc, v27, v24")
    a("s_nop 1")
    a(f"s_cbranch_vccz {name}_noscale")
    a("v_sub_f32 v28, v24, v27")
    a("v_mul_f32 v28, s35, v28")
    a("v_exp_f32 v28, v28")
    a("s_nop 0")
    a("v_mul_f32 v25, v25, v28")
    for r in range(64):
        a(f"v_mul_f32 v{64+r}, v{64+r}, v28")
    a.label(f"{name}_noscale")
    a("v_mov_b32 v24, v27")
    a("v_mul_f32 v26, s35, v27")
    for r in range(16):
        a(f"v_fma_f32 v{128+r}, v{128+r}, s35, -v26")
        a(f"v_exp_f32 v{128+r}, v{128+r}")
    a("s_nop 0")
    for r in range(16):
        a(f"v_add_f32 v25, v25, v{128+r}")
    for r in range(8):
        a(f"v_cvt_pk_bf16_f32 v{144+r}, v{128+2*r}, v{129+2*r}")
    a("s_waitcnt lgkmcnt(0)")
    a("s_nop 0")
    for ks2 in range(2):
        for dt in range(4):
            r = 184 + (ks2 * 4 + dt) * 4
            a(f"v_mfma_f32_32x32x16_bf16 v[{64+16*dt}:{79+16*dt}], v[{r}:{r+3}], v[{144+4*ks2}:{147+4*ks2}], v[{64+16*dt}:{79+16*dt}]")
    a(f"s_add_u32 s34, s34, {SLOT}")
    a(f"s_cmp_ge_u32 s34, {NS*SLOT}")
    a(f"s_mov_b32 s36, {SLOT}")
    a(f"s_cselect_b32 s36, {-(NS-1)*SLOT}, s36")
    a("s_cselect_b32 s34, 0, s34")
    for r in range(8, 24):
        a(f"v_add_u32 v{r}, s36, v{r}")
    a("s_add_u32 s32, s32, 1")
    a(f"s_cmp_lt_u32 s32, {NT}")
    a(f"s_cbranch_scc1 {name}_loop")
    a("s_nop 15")
    a("v_mov_b32 v28, v25")
    a("s_nop 1")
    a("v_permlane32_swap_b32 v25, v28")
    a("v_add_f32 v25, v25, v28")
    a("s_waitcnt vmcnt(0) lgkmcnt(0)")
    a("s_barrier")
    a("v_lshlrev_b32 v2, 4, v1")
    a("s_lshl_b32 s3, s25, 14")
    a("v_add_u32 v2, s3, v2")
    a("v_lshlrev_b32 v3, 3, v1")
    a("s_lshl_b32 s3, s25, 9")
    a("v_add_u32 v3, s3, v3")
    a("v_add_u32 v3, 0x10000, v3")
    a("s_cmp_eq_u32 s26, 0")
    a(f"s_cbranch_scc1 {name}_m0")
    for c in range(16):
        a(f"ds_write_b128 v2, v[{64+4*c}:{67+4*c}] offset:{c*1024}")
    a("ds_write_b64 v3, v[24:25]")
    a("s_waitcnt lgkmcnt(0)")
    a("s_barrier")
    a(f"s_branch {name}_done")
    a.label(f"{name}_m0")
    a("s_barrier")
    for c in range(16):
        a(f"ds_read_b128 v[{128+4*c}:{131+4*c}], v2 offset:{c*1024}")
    a("ds_read_b64 v[26:27], v3")
    a("s_waitcnt lgkmcnt(0)")
    a("v_max_f32 v28, v24, v26")
    a("v_sub_f32 v29, v24, v28")
    a("v_sub_f32 v30, v26, v28")
    a("v_mul_f32 v29, s35, v29")
    a("v_mul_f32 v30, s35, v30")
    a("v_exp_f32 v29, v29")
    a("v_exp_f32 v30, v30")
    a("s_nop 0")
    a("v_mul_f32 v25, v25, v29")
    a("v_fmac_f32 v25, v27, v30")
    a("v_rcp_f32 v25, v25")
    a("s_nop 0")
    a("v_mul_f32 v29, v29, v25")
    a("v_mul_f32 v30, v30, v25")
    for r in range(64):
        a(f"v_mul_f32 v{64+r}, v{64+r}, v29")
        a(f"v_fmac_f32 v{64+r}, v{128+r}, v30")
    a("s_lshl_b32 s3, s2, 15")
    a(f"s_add_u32 s3, s3, {WS_O}")
    add64(a, 20, 20, "s3")
    srd(a, 12, 20, 32768)
    a("s_lshl_b32 s3, s25, 13")
    a("v_lshlrev_b32 v4, 4, v1")
    a("v_add_u32 v4, s3, v4")
    for dt in range(4):
        for jp in range(2):
            T = 152 + ((dt * 2 + jp) & 1) * 4
            for q in range(2):
                base = 64 + 16 * dt + 4 * (2 * jp + q)
                a(f"v_cvt_pk_bf16_f32 v{T+2*q}, v{base}, v{base+1}")
                a(f"v_cvt_pk_bf16_f32 v{T+2*q+1}, v{base+2}, v{base+3}")
            a("s_nop 1")
            a(f"v_permlane32_swap_b32 v{T}, v{T+2}")
            a(f"v_permlane32_swap_b32 v{T+1}, v{T+3}")
            a(f"s_mov_b32 s29, {(dt*2+jp)*1024}")
            a(f"buffer_store_dwordx4 v[{T}:{T+3}], v4, s[12:15], s29 offen")
            a("s_nop 1")
    a.label(f"{name}_done")
    a("s_endpgm")
    return a.text(), kd(name, 216, 40)
```

```python
import sys, os
EXP = os.environ.get("EXP", "")

WS_Q = 0
WS_O = 8 << 20
WS_P = 16 << 20

HEADER = """; Kernarg layout for this problem (64 bytes, ptrs only, base s[0:1]):
"""


class Asm:
    def __init__(self):
        self.L = []

    def __call__(self, s):
        self.L.append("    " + s)

    def label(self, s):
        self.L.append(s + ":")

    def raw(self, s):
        self.L.append(s)

    def text(self):
        return "\n".join(self.L) + "\n"


def add64(a, dst_lo, src_lo, imm_or_sreg):
    a(f"s_add_u32 s{dst_lo}, s{src_lo}, {imm_or_sreg}")
    a(f"s_addc_u32 s{dst_lo+1}, s{src_lo+1}, 0")


def srd(a, d, base_lo, nrec):
    a(f"s_mov_b32 s{d}, s{base_lo}")
    a(f"s_and_b32 s{d+1}, s{base_lo+1}, 0xffff")
    a(f"s_mov_b32 s{d+2}, {nrec}")
    a(f"s_mov_b32 s{d+3}, 0x00020000")


def kd(name, nvgpr, nsgpr=96):
    acc = (nvgpr + 3) // 4 * 4
    return f""".section .rodata,"a"
.p2align 6
.amdhsa_kernel {name}
  .amdhsa_next_free_vgpr {nvgpr}
  .amdhsa_next_free_sgpr {nsgpr}
  .amdhsa_accum_offset {acc}
  .amdhsa_group_segment_fixed_size 0
  .amdhsa_kernarg_size 64
  .amdhsa_user_sgpr_count 2
  .amdhsa_user_sgpr_kernarg_segment_ptr 1
  .amdhsa_system_sgpr_workgroup_id_x 1
.end_amdhsa_kernel
.text
"""


def gen_proj(name, mode):
    a = Asm()
    a.raw(".p2align 8")
    a.label(name)
    a("s_cmp_ge_u32 s2, 256")
    a(f"s_cbranch_scc1 {name}_done")
    if mode == "q":
        a("s_load_dwordx2 s[16:17], s[0:1], 0")
        a("s_load_dwordx2 s[18:19], s[0:1], 24")
    else:
        a("s_load_dwordx2 s[18:19], s[0:1], 32")
    a("s_load_dwordx2 s[20:21], s[0:1], 56")
    a("s_lshr_b32 s22, s2, 5")
    a("v_and_b32 v1, 63, v0")
    a("v_lshrrev_b32 v2, 6, v0")
    a("s_nop 0")
    a("v_readfirstlane_b32 s24, v2")
    a("s_waitcnt lgkmcnt(0)")
    if mode == "q":
        SA, SW = 1024, 8192
        a("s_and_b32 s23, s2, 31")
        a("s_mul_i32 s3, s22, 114688")
        add64(a, 16, 16, "s3")
        srd(a, 4, 16, 114688)
        a("s_lshl_b32 s3, s23, 8")
        add64(a, 18, 18, "s3")
        a("s_sub_u32 s25, 4194304, s3")
        srd(a, 8, 18, "s25")
        a("s_mul_i32 s3, s22, 917504")
        add64(a, 20, 20, "s3")
        srd(a, 12, 20, 917504)
        a("s_lshl_b32 s26, s23, 8")
        a("s_mov_b32 s27, 0")
    else:
        SA, SW = 8192, 1024
        a("s_bfe_u32 s23, s2, 0x20003")
        a("s_and_b32 s28, s2, 7")
        a("s_lshl_b32 s3, s22, 3")
        a("s_add_u32 s3, s3, s28")
        a("s_lshl_b32 s3, s3, 17")
        a(f"s_add_u32 s3, s3, {WS_O}")
        a("s_mov_b32 s16, s20")
        a("s_mov_b32 s17, s21")
        add64(a, 16, 16, "s3")
        srd(a, 4, 16, 131072)
        a("s_lshl_b32 s3, s28, 19")
        a("s_lshl_b32 s29, s23, 8")
        a("s_add_u32 s3, s3, s29")
        add64(a, 18, 18, "s3")
        a("s_sub_u32 s25, 4194304, s3")
        srd(a, 8, 18, "s25")
        a("s_lshl_b32 s3, s2, 16")
        a(f"s_add_u32 s3, s3, {WS_P}")
        add64(a, 20, 20, "s3")
        srd(a, 12, 20, 65536)
        a("s_lshl_b32 s26, s23, 9")
        a("s_lshl_b32 s27, s28, 10")

    a("v_lshrrev_b32 v2, 4, v1")
    a("v_and_b32 v3, 15, v1")
    a("s_lshl_b32 s3, s24, 4")
    for j in range(4):
        a(f"v_add_u32 v4, {4*j}, v2")
        a("v_add_u32 v4, s3, v4")
        a(f"v_mul_u32_u24 v4, {SW}, v4") if SW < 65536 else None
        a("v_lshlrev_b32 v5, 2, v2")
        a(f"v_or_b32 v5, {j}, v5")
        a("v_xor_b32 v5, v5, v3")
        a("v_lshlrev_b32 v5, 4, v5")
        a(f"v_add_u32 v{6+j}, v4, v5")
    a("s_and_b32 s3, s24, 3")
    a("s_lshl_b32 s3, s3, 5")
    a("v_and_b32 v4, 31, v1")
    a("v_add_u32 v4, s3, v4")
    a(f"v_mul_u32_u24 v10, {SA}, v4")
    a("v_lshrrev_b32 v5, 5, v1")
    a("v_lshlrev_b32 v11, 4, v5")
    a("v_add_u32 v10, v10, v11")
    a("v_add_u32 v10, s27, v10")
    if mode == "o":
        a("s_and_b32 s3, s24, 3")
        a("s_lshl_b32 s3, s3, 13")
        a("v_lshlrev_b32 v10, 4, v1")
        a("v_add_u32 v10, s3, v10")
    a("s_lshl_b32 s30, s24, 12")
    for c in range(4):
        for ks in range(8 * c, 8 * c + 8):
            if mode == "q":
                a(f"buffer_load_dwordx4 v[{32+4*ks}:{35+4*ks}], v10, s[4:7], 0 offen offset:{ks*32}")
            else:
                a(f"s_mov_b32 s29, {(ks>>3)*32768 + (ks&7)*1024}")
                a(f"buffer_load_dwordx4 v[{32+4*ks}:{35+4*ks}], v10, s[4:7], s29 offen")
        a(f"s_mov_b32 s31, {c*128*SW}")
        for j in range(4):
            a(f"s_add_u32 m0, s30, {c*32768 + j*1024}")
            a("s_nop 0")
            if "now" not in EXP: a(f"buffer_load_dwordx4 v{6+j}, s[8:11], s31 offen lds")
    a("v_and_b32 v2, 15, v1")
    a("v_bfe_u32 v3, v1, 4, 1")
    a("v_lshrrev_b32 v5, 5, v1")
    a("s_lshr_b32 s3, s24, 2")
    a("s_lshl_b32 s3, s3, 3")
    for ntl in range(2):
        for rd in range(2):
            a("v_lshrrev_b32 v20, 2, v2")
            a("v_lshl_add_u32 v21, v5, 3, v20")
            a(f"v_add_u32 v21, {4*rd}, v21")
            a("v_bfe_u32 v22, v2, 1, 1")
            a("v_lshl_add_u32 v22, v3, 1, v22")
            a(f"v_add_u32 v22, {4*ntl}, v22")
            a("v_add_u32 v22, s3, v22")
            a("v_lshlrev_b32 v23, 2, v20")
            a("v_lshl_add_u32 v23, v5, 1, v23")
            a(f"v_add_u32 v23, {rd}, v23")
            a("v_xor_b32 v22, v22, v23")
            a("v_lshlrev_b32 v22, 4, v22")
            a("v_lshl_add_u32 v22, v21, 8, v22")
            a("v_and_b32 v23, 1, v2")
            a(f"v_lshl_add_u32 v{12+ntl*2+rd}, v23, 3, v22")
    for t in range(4):
        a(f"v_add_u32 v{16+t}, 0x10000, v{12+t}")
    a("s_waitcnt vmcnt(0)")
    a("s_barrier")
    ACC = 160
    AF = 192

    def rd_frags(ks, buf):
        hi = ks >> 4
        off = (ks & 15) * 4096
        for ntl in range(2):
            for rd in range(2):
                r = AF + buf * 8 + ntl * 4 + rd * 2
                a(f"ds_read_b64_tr_b16 v[{r}:{r+1}], v{12+hi*4+ntl*2+rd} offset:{off}")

    rd_frags(0, 0)
    for ks in range(32):
        buf = ks & 1
        if ks + 1 < 32:
            rd_frags(ks + 1, buf ^ 1)
            a("s_waitcnt lgkmcnt(4)")
        else:
            a("s_waitcnt lgkmcnt(0)")
        for ntl in range(2):
            r = AF + buf * 8 + ntl * 4
            c = f"v[{ACC+16*ntl}:{ACC+16*ntl+15}]"
            src_c = "0" if ks == 0 else c
            a(f"v_mfma_f32_32x32x16_bf16 {c}, v[{r}:{r+3}], v[{32+4*ks}:{35+4*ks}], {src_c}")
    a("s_nop 15")
    a("s_nop 3")
    a("s_and_b32 s3, s24, 3")
    a("s_lshl_b32 s3, s3, 5")
    a("v_and_b32 v4, 31, v1")
    a("v_add_u32 v4, s3, v4")
    a("v_lshrrev_b32 v5, 5, v1")
    a("s_lshr_b32 s3, s24, 2")
    if mode == "q":
        a("v_lshlrev_b32 v4, 13, v4")
        a("v_lshl_add_u32 v4, v5, 4, v4")
        a("s_lshl_b32 s3, s3, 7")
        a("s_add_u32 s3, s3, s26")
        a("v_add_u32 v4, s3, v4")
        for ntl in range(2):
            for jp in range(2):
                T = 208
                for q in range(2):
                    base = ACC + 16 * ntl + 4 * (2 * jp + q)
                    a(f"v_cvt_pk_bf16_f32 v{T+2*q}, v{base}, v{base+1}")
                    a(f"v_cvt_pk_bf16_f32 v{T+2*q+1}, v{base+2}, v{base+3}")
                a("s_nop 1")
                a(f"v_permlane32_swap_b32 v{T}, v{T+2}")
                a(f"v_permlane32_swap_b32 v{T+1}, v{T+3}")
                a(f"buffer_store_dwordx4 v[{T}:{T+3}], v4, s[12:15], 0 offen offset:{ntl*64+jp*32}")
                a("s_nop 1")
    else:
        a("s_lshl_b32 s3, s24, 13")
        a("v_lshlrev_b32 v4, 4, v1")
        a("v_add_u32 v4, s3, v4")
        for ntl in range(2):
            for rq in range(4):
                base = ACC + 16 * ntl + 4 * rq
                a(f"s_mov_b32 s29, {(ntl*4+rq)*1024}")
                a(f"buffer_store_dwordx4 v[{base}:{base+3}], v4, s[12:15], s29 offen")
    a.label(f"{name}_done")
    a("s_endpgm")
    return a.text(), kd(name, 216, 40)


def gen_reduce(name):
    a = Asm()
    a.raw(".p2align 8")
    a.label(name)
    a("s_cmp_ge_u32 s2, 512")
    a(f"s_cbranch_scc1 {name}_done")
    a("s_load_dwordx2 s[16:17], s[0:1], 40")
    a("s_load_dwordx2 s[20:21], s[0:1], 56")
    a("s_lshr_b32 s13, s2, 4")
    a("s_and_b32 s14, s2, 15")
    a("s_lshl_b32 s14, s14, 8")
    a("v_add_u32 v1, s14, v0")
    a("v_lshlrev_b32 v2, 4, v1")
    a("s_lshl_b32 s15, s13, 19")
    a("v_add_u32 v2, s15, v2")
    a("v_and_b32 v3, 31, v1")
    a("v_bfe_u32 v36, v1, 9, 2")
    a("v_lshl_add_u32 v3, v36, 5, v3")
    a("v_cmp_gt_u32 vcc, 112, v3")
    a("s_lshr_b32 s14, s13, 2")
    a("s_mul_i32 s14, s14, 112")
    a("v_add_u32 v3, s14, v3")
    a("v_lshlrev_b32 v3, 10, v3")
    a("s_and_b32 s14, s13, 3")
    a("s_lshl_b32 s14, s14, 8")
    a("v_add_u32 v3, s14, v3")
    a("v_bfe_u32 v36, v1, 11, 1")
    a("v_lshl_add_u32 v3, v36, 7, v3")
    a("v_bfe_u32 v36, v1, 6, 3")
    a("v_lshl_add_u32 v3, v36, 4, v3")
    a("v_bfe_u32 v36, v1, 5, 1")
    a("v_lshl_add_u32 v3, v36, 3, v3")
    a("s_waitcnt lgkmcnt(0)")
    add64(a, 20, 20, WS_P)
    srd(a, 4, 20, 256 * 65536)
    srd(a, 8, 16, 896 * 1024)
    for s in range(8):
        a(f"s_mov_b32 s12, {s*65536}")
        a(f"buffer_load_dwordx4 v[{4+4*s}:{7+4*s}], v2, s[4:7], s12 offen")
    a("s_waitcnt vmcnt(0)")
    for s in range(1, 8):
        for j in range(4):
            a(f"v_add_f32 v{4+j}, v{4+j}, v{4+4*s+j}")
    a("s_and_saveexec_b64 s[14:15], vcc")
    a(f"s_cbranch_execz {name}_done")
    a("v_cvt_pk_bf16_f32 v4, v4, v5")
    a("v_cvt_pk_bf16_f32 v5, v6, v7")
    a("buffer_store_dwordx2 v[4:5], v3, s[8:11], 0 offen")
    a.label(f"{name}_done")
    a("s_endpgm")
    return a.text(), kd(name, 40, 24)


def main():
    import gen_attn
    launches = [
        ("qproj_kernel", 256, 512, 131072),
        ("attn_kernel", 256, 512, gen_attn.LDS_BYTES),
        ("oproj_kernel", 256, 512, 131072),
        ("reduce_kernel", 512, 256, 0),
    ]
    out = HEADER
    for n, g, b, l in launches:
        out += f"; @launch kernel={n} grid=({g},1,1) block=({b},1,1) lds={l}\n"
    out += '.amdgcn_target "amdgcn-amd-amdhsa--gfx950"\n.text\n'
    parts = [gen_proj("qproj_kernel", "q"), gen_attn.gen_attn("attn_kernel"), gen_proj("oproj_kernel", "o"),
             gen_reduce("reduce_kernel")]
    for body, desc in parts:
        out += body + desc
    open(sys.argv[1] if len(sys.argv) > 1 else "standalone__gqa_block_cached__near_ridge.s", "w").write(out)


if __name__ == "__main__":
    main()
```
